```python
import torch

def _softmax(x, axis=-1):
    return torch.softmax(x, dim=axis)
def _gelu(x):
    return torch.nn.functional.gelu(x, approximate="tanh")
def _silu(x):
    return torch.nn.functional.silu(x)
def _sigmoid(x):
    return torch.sigmoid(x)
def _layernorm(x, axis=-1, eps=1e-5):
    m = x.mean(dim=axis, keepdim=True)
    v = x.var(dim=axis, keepdim=True, unbiased=False)
    return (x - m) / torch.sqrt(v + eps)
def _scatter_add(tgt, idx, src, axis=0):
    return tgt.clone().index_add_(axis, idx, src)
def _segment_sum(src, seg, n):
    out = torch.zeros((n,) + src.shape[1:], dtype=src.dtype)
    return out.index_add_(0, seg, src)
def _pad(x, pw):
    flat = tuple(v for pair in reversed(pw) for v in pair)
    return torch.nn.functional.pad(x, flat)

kernel_name = 'parallel_sum__sliding_block_cached__geglu_ffn__decode'

def setup_inputs():

    _w = (lambda a: (lambda t: t.to(torch.bfloat16) if t.is_floating_point() else t)(torch.as_tensor(a)))
    def _A_setup():
        B, Sq, D = 1, 1, 1024
        Hq, Hkv, Sk, Dh = 32, 4, 65536, 128
        assert Hq % Hkv == 0, (Hq, Hkv)
        return {
            "x": _w((lambda *s: torch.randn(*s, dtype=torch.bfloat16) * 0.05)(B, Sq, D)),
            "k_cache": _w((lambda *s: torch.randn(*s, dtype=torch.bfloat16) * 3.2)(B, Hkv, Sk, Dh)),
            "v_cache": _w((lambda *s: torch.randn(*s, dtype=torch.bfloat16) * 1.6)(B, Hkv, Sk, Dh)),
            "wq": _w((lambda *s: torch.randn(*s, dtype=torch.bfloat16) * 3.2)(D, Hq * Dh) * (D ** -0.5)),
            "wo": _w((lambda *s: torch.randn(*s, dtype=torch.bfloat16) * 1.6)(Hq * Dh, D) * ((Hq * Dh) ** -0.5)),
        }
    _A_in = _A_setup()

    def _B_setup():
        B, S, D, F = 1, 1, 1024, 3584
        return {
            "x": _w((lambda *s: torch.randn(*s, dtype=torch.bfloat16) * 0.05)(B, S, D)),
            "w_gate": _w((lambda *s: torch.randn(*s, dtype=torch.bfloat16) * 0.05)(D, F)),
            "w_up": _w((lambda *s: torch.randn(*s, dtype=torch.bfloat16) * 0.05)(D, F)),
            "w_down": _w((lambda *s: torch.randn(*s, dtype=torch.bfloat16) * 0.05)(F, D)),
        }
    _B_in = _B_setup()

    return {
        "A_x": _A_in["x"],
        "A_k_cache": _A_in["k_cache"],
        "A_v_cache": _A_in["v_cache"],
        "A_wq": _A_in["wq"],
        "A_wo": _A_in["wo"],
        "B_x": _B_in["x"],
        "B_w_gate": _B_in["w_gate"],
        "B_w_up": _B_in["w_up"],
        "B_w_down": _B_in["w_down"],
    }

def reference(A_x, A_k_cache, A_v_cache, A_wq, A_wo, B_x, B_w_gate, B_w_up, B_w_down):
    def _A_ref(x, k_cache, v_cache, wq, wo):
        B, Sq, D = x.shape
        Hq, Dh = 32, 128
        Hkv, Sk = k_cache.shape[1], k_cache.shape[2]
        W = min(4096, max(256, Sk // 4))
        rep = Hq // Hkv
        q = (lambda x, *d: x.permute(*d))((x @ wq).reshape(B, Sq, Hq, Dh), 0, 2, 1, 3)
        k = (lambda x, n, axis: torch.repeat_interleave(x, n, dim=axis))(k_cache[:, :, Sk - W:, :], rep, axis=1)
        v = (lambda x, n, axis: torch.repeat_interleave(x, n, dim=axis))(v_cache[:, :, Sk - W:, :], rep, axis=1)
        scores = torch.einsum("bhqd,bhkd->bhqk", q, k) * (Dh ** -0.5)
        p = _softmax(scores, axis=-1)
        o = torch.einsum("bhqk,bhkd->bhqd", p, v)
        return (lambda x, *d: x.permute(*d))(o, 0, 2, 1, 3).reshape(B, Sq, Hq * Dh) @ wo

    def _B_ref(x, w_gate, w_up, w_down):
        return (_gelu(x @ w_gate) * (x @ w_up)) @ w_down

    x = A_x
    xn = _layernorm(x, axis=-1)
    return x + _A_ref(xn, A_k_cache, A_v_cache, A_wq, A_wo) + _B_ref(xn, B_w_gate, B_w_up, B_w_down)
```

```python
import re
TRANS = ('v_exp_f32', 'v_log_f32', 'v_rcp_f32', 'v_rsq_f32', 'v_sqrt_f32', 'v_sin_f32', 'v_cos_f32', 'v_rcp_iflag_f32')
def regs(tok):
    tok = tok.strip()
    tok = re.sub(r'^-', '', tok)
    tok = re.sub(r'^abs\((.*)\)$', r'\1', tok)
    tok = re.sub(r'^\|(.*)\|$', r'\1', tok)
    m = re.fullmatch(r'([vsa])(\d+)', tok)
    if m: return {(m.group(1), int(m.group(2)))}
    m = re.fullmatch(r'([vsa])\[(\d+):(\d+)\]', tok)
    if m: return {(m.group(1), i) for i in range(int(m.group(2)), int(m.group(3)) + 1)}
    if tok == 'vcc': return {('s', 'vcc_lo'), ('s', 'vcc_hi')}
    if tok in ('vcc_lo', 'vcc_hi'): return {('s', tok)}
    if tok == 'exec': return {('s', 'exec')}
    if tok == 'm0': return {('s', 'm0')}
    return set()
class I:
    def __init__(s, text):
        s.text = text
        t = text.split(';')[0].strip()
        s.label = t[:-1] if t.endswith(':') else None
        s.mn = ''; s.dst = set(); s.src = set(); s.srcC = set(); s.data = set()
        s.valu = s.mfma = s.dpp = s.perml = s.trans = s.vmem = s.ds = s.salu = s.lds_dma = s.readlane = False
        s.states = 1
        s.branch = None
        if s.label or not t or t.startswith('.'):
            s.states = 0; return
        p = t.split(None, 1)
        s.mn = mn = p[0]
        rest = p[1] if len(p) > 1 else ''
        ops = [x.strip() for x in re.split(r',(?![^\[]*\])', rest)] if rest else []
        if ops:
            last = ops[-1].split()
            mods = ' '.join(last[1:]); ops[-1] = last[0] if last else ''
        else: mods = ''
        s.mods = mods
        R = [regs(x) for x in ops]
        if mn == 's_nop': s.states = int(ops[0], 0) + 1; return
        if mn.startswith('s_cbranch') or mn == 's_branch': s.branch = ops[0]; s.salu = True; return
        if mn.startswith('v_mfma'):
            s.mfma = True; s.dst = R[0]; s.src = R[1] | R[2]; s.srcC = R[3]
            s.passes = 4 if '16x16x32' in mn else (8 if '32x32x16' in mn or '16x16x4_f32' in mn else 16)
        elif mn.startswith('v_'):
            s.valu = True
            s.trans = any(mn.startswith(x) for x in TRANS)
            s.dpp = ('row_' in mods or 'quad_perm' in mods or mn.endswith('_dpp'))
            if mn.startswith('v_permlane'):
                s.perml = True; s.dst = R[0] | R[1]; s.src = R[0] | R[1]
            elif mn.startswith('v_readlane') or mn.startswith('v_readfirstlane'):
                s.readlane = True; s.dst = R[0]; s.src = set().union(*R[1:])
            else:
                s.dst = R[0]; s.src = set().union(*R[1:]) if len(R) > 1 else set()
                if mn.startswith(('v_fmac', 'v_dot2c', 'v_pk_fmac')) or s.dpp or mn.startswith('v_writelane'): s.src |= R[0]
                if mn.startswith('v_cmpx'): s.dst |= {('s', 'exec')}
                if mn.startswith(('v_add_co', 'v_sub_co', 'v_addc_co', 'v_subb_co')): s.dst |= R[1]
                if mn.startswith('v_cndmask') and len(ops) == 3: s.src |= regs('vcc')
        elif mn.startswith(('buffer_', 'global_')):
            s.vmem = True
            s.lds_dma = bool(re.search(r'\blds\b', mods)) or 'load_lds' in mn
            if 'store' in mn or 'atomic' in mn:
                if mn.startswith('buffer_'): s.data = R[0]
                else: s.data = R[1]
                s.src = set().union(*R)
                s.wide = len(s.data) >= 3
            elif s.lds_dma: s.src = set().union(*R) | {('s', 'm0')}
            elif R: s.dst = R[0]; s.src = set().union(*R[1:])
        elif mn.startswith('ds_'):
            s.ds = True
            if mn.startswith(('ds_read', 'ds_bpermute', 'ds_permute', 'ds_swizzle')) or '_rtn' in mn:
                s.dst = R[0]; s.src = set().union(*R[1:])
            else: s.src = set().union(*R)
        elif mn.startswith('s_'):
            s.salu = True
            if mn.startswith(('s_cmp', 's_waitcnt', 's_barrier', 's_sleep', 's_setprio', 's_endpgm', 's_bitcmp')):
                s.src = set().union(*R) if R else set()
            else:
                s.dst = R[0] if R else set(); s.src = set().union(*R[1:]) if len(R) > 1 else set()
                if 'saveexec' in mn: s.dst |= {('s', 'exec')}
def V(x): return {r for r in x if r[0] in 'va'}
def S(x): return {r for r in x if r[0] == 's'}
def need(p, c):
    n = 0
    if p.valu:
        w = V(p.dst)
        if w:
            if c.valu and c.dpp and (w & V(c.src)): n = max(n, 2)
            if c.perml and (w & V(c.src)): n = max(n, 2)
            if c.mfma and (w & (c.src | c.srcC)): n = max(n, 2)
            if c.readlane and (w & V(c.src)): n = max(n, 1)
            if p.trans and c.valu and not c.trans and (w & V(c.src)): n = max(n, 1)
            if p.trans and (c.mfma) and (w & (c.src | c.srcC)): n = max(n, 2)
        ws = S(p.dst)
        if ws:
            if c.valu and (ws & S(c.src)): n = max(n, 4 if c.readlane else 2)
            if c.vmem and (ws & S(c.src)): n = max(n, 5)
            if ('s', 'exec') in ws:
                if c.valu and c.dpp: n = max(n, 5)
                if c.mfma or c.perml or c.readlane: n = max(n, 4)
    if p.mfma:
        D = p.dst
        big = {4: 8, 8: 12, 16: 20}[p.passes]; ov = {4: 6, 8: 10, 16: 18}[p.passes]; war = {4: 3, 8: 7, 16: 15}[p.passes]
        if c.mfma:
            if D & c.src: n = max(n, big)
            if (D & c.srcC) and not (c.srcC == D and c.passes == p.passes): n = max(n, ov)
            if (D & c.dst) and not (c.srcC == D): n = max(n, big)
        elif c.valu or c.vmem or c.ds:
            if D & (V(c.src) | V(c.dst)): n = max(n, big)
        if c.valu and (p.srcC & V(c.dst)): n = max(n, war)
    if p.vmem and p.data and getattr(p, 'wide', False):
        if (c.valu or c.mfma) and (p.data & V(c.dst)): n = max(n, 2)
        elif (p.data & V(c.dst)): n = max(n, 1)
    if p.salu and ('s', 'm0') in p.dst and c.lds_dma: n = max(n, 1)
    return n
def fix(lines, verbose=False):
    ins = [I(l) for l in lines]
    W = 24
    extra = [0] * len(ins)
    for _ in range(6):
        snap = getattr(fix, '_s', {})
        snap = {} if _ == 0 else snap
        changed = False
        hist = []
        newsnap = {k: list(v) for k, v in snap.items()}
        dead = False
        for k, c in enumerate(ins):
            if c.label:
                h = [] if dead else hist
                h = h + newsnap.get(c.label, [])
                hist = h; dead = False
                continue
            if c.states == 0: continue
            n = 0
            for p, d in hist:
                n = max(n, need(p, c) - d - extra[k])
            if n > 0:
                extra[k] += n; changed = True
            adv = extra[k] + c.states
            hist = [(p, d + adv) for p, d in hist if d + adv < W]
            hist.append((c, c.states - 1 if c.mn != 's_nop' else 0))
            if c.branch:
                cur = newsnap.setdefault(c.branch, [])
                add = [(p, d) for p, d in hist if (p, d) not in cur]
                if add: cur.extend(add); changed = True
                if c.mn == 's_branch': dead = True
            if c.mn == 's_endpgm': dead = True
        fix._s = newsnap
        if not changed: break
    out = []
    tot = 0
    for k, c in enumerate(ins):
        e = extra[k]; tot += e
        while e > 0:
            m = min(e, 16); out.append(f's_nop {m-1}'); e -= m
        out.append(c.text)
    if verbose: print('hazard nops inserted:', tot)
    return out
if __name__ == '__main__':
    t = ['v_mov_b32 v1, 0', 'v_add_f32_dpp v2, v1, v1 row_ror:1 row_mask:0xf bank_mask:0xf', 'v_mfma_f32_16x16x32_bf16 v[4:7], v[0:3], v[8:11], 0', 'v_add_f32 v9, v4, v4', 'v_exp_f32 v1, v2', 'v_mul_f32 v3, v1, v1',
         'v_cmp_ne_u32 vcc, 0, v1', 'v_cndmask_b32 v1, v2, v3, vcc', 's_mov_b32 m0, s3', 'buffer_load_dwordx4 v3, s[8:11], s16 offen offset:1024 nt lds']
    print('\n'.join(fix(t, True)))
```

```python
import sys
from hazard import fix

NAME = 'parallel_sum__sliding_block_cached__geglu_ffn__decode'

WS_E = 0x0
WS_QP = 0x10000
WS_GU = 0x20000
WS_OP = 0x40000
WS_ML = 0x80000
WS_FIN = 0x100000
WS_STAMP = 0x8000000
L_K = 0
L_V = 65536
L_MISC = 131072
L_Q = L_MISC
L_MX = L_Q + 2304
L_LS = L_MX + 128
L_P = L_LS + 128
L_HS = L_P + 4096
L_RED = L_HS + 512
L_END = L_RED + 4096
L_XN = 0
L_RQ = 4096
LDS_BYTES = (L_END + 1279) // 1280 * 1280

LOG2E = 0x3fb8aa3b
SCALE = 0x3db504f3
DPP = 'row_mask:0xf bank_mask:0xf'

sWAVE = 3
rX, rWS, rM1, rM2, rM3, rWO, rWD, rOUT = 8, 12, 16, 20, 24, 28, 32, 36
sT = 40
sTS = 41
sCA, sCB, sMSK = 45, 46, 47
sO1, sO2, sO3, sOO, sOD = 48, 49, 50, 51, 52
sGO, sGM, sGH, sFIN = 53, 54, 55, 56
sPUB = 57
sCNT = 58
sHI8 = 60
sVAL = 62
sST = 64
sTMP = 4
sRG, sC64 = 96, 97
sL2E = 98
sHIM = 99


def srd(r):
    return f's[{r}:{r+3}]'


class Gen:
    def __init__(g, **kw):
        g.o = []
        g.diag = kw.get('diag', False)
        g.p = dict(dP=5, dA=8, burstP=8, ntf='nt', posO=11, posH=4, posQ=6, chkO=6, lnpump=3, apump=5, spin=1 << 18, pretouch=0, posOA=3, posHA=2)
        g.p.update(kw)
        g.nlab = 0

    def a(g, s):
        g.o.append(s)

    def lab(g, base):
        g.nlab += 1
        return f'L_{base}{g.nlab}'

    def stamp(g, k):
        if g.diag:
            g.a(f's_memrealtime s[{sST+2*k}:{sST+2*k+1}]')

    def reset_stream(g):
        g.ops = []
        g.landed = -1
        g.pending = []
        g.sidx = []

    def issue(g, name, lines, stream=False):
        for l in lines:
            g.a(l)
        g.ops.append(name)
        if stream:
            g.sidx.append(len(g.ops) - 1)

    def wait(g, name):
        i = g.ops.index(name)
        if i <= g.landed:
            return
        g.a(f's_waitcnt vmcnt({len(g.ops)-1-i})')
        g.landed = i

    def pump(g, n=1):
        for _ in range(n):
            if not g.pending:
                return
            name, lines, stream = g.pending.pop(0)
            g.issue(name, lines, stream)

    def inflight(g):
        return sum(1 for i in g.sidx if i > g.landed)

    def top_up(g, depth):
        while g.pending and g.inflight() < depth:
            g.pump()

    def drain_to(g, name, depth):
        while name not in g.ops:
            if g.inflight() >= depth:
                live = [i for i in g.sidx if i > g.landed]
                g.wait(g.ops[live[len(live) - depth]])
            g.pump()

    def allreduce16(g, op, regs):
        for r in (1, 2, 4, 8):
            for v in regs:
                g.a(f'{op}_dpp v{v}, v{v}, v{v} row_ror:{r} {DPP}')

    def swapred(g, op, regs, tmps, which):
        for v, t in zip(regs, tmps):
            g.a(f'v_mov_b32 v{t}, v{v}')
        for v, t in zip(regs, tmps):
            g.a(f'v_permlane{which}_swap_b32 v{v}, v{t}')
        for v, t in zip(regs, tmps):
            g.a(f'{op} v{v}, v{v}, v{t}')

    def tag4(g, r, vT):
        for k in range(4):
            g.a(f'v_perm_b32 v{r+k}, v{r+k}, v{vT}, s{sTS+k}')

    def check(g, quads, t0, t1, t2, vT, valid=None):
        for n, r in enumerate(quads):
            g.a(f'v_perm_b32 v{t0}, v{r+1}, v{r}, s{sCA}')
            g.a(f'v_perm_b32 v{t1}, v{r+3}, v{r+2}, s{sCB}')
            if n == 0:
                g.a(f'v_bitop3_b32 v{t2}, v{t0}, v{t1}, v{vT} bitop3:0x56')
            else:
                g.a(f'v_bitop3_b32 v{t0}, v{t0}, v{t1}, v{vT} bitop3:0x56')
                g.a(f'v_or_b32 v{t2}, v{t2}, v{t0}')
        g.a(f'v_cmp_ne_u32 vcc, 0, v{t2}')
        if valid is not None:
            g.a(f's_and_b64 vcc, vcc, s[{valid}:{valid+1}]')

    def gather_check(g, lines, quads, tmps, vT, valid=None, cntreg=None):
        Lc, Ld = g.lab('chk'), g.lab('ok')
        g.a(f's_mov_b32 s{sCNT}, 0')
        g.a(f'{Lc}:')
        g.check(quads, *tmps, vT, valid)
        g.a(f's_cbranch_vccz {Ld}')
        g.a(f's_add_u32 s{sCNT}, s{sCNT}, 1')
        g.a(f's_cmp_gt_u32 s{sCNT}, {g.p["spin"]}')
        g.a(f's_cbranch_scc1 {Ld}')
        for l in lines:
            g.a(l)
        g.a('s_waitcnt vmcnt(0)')
        g.a(f's_branch {Lc}')
        g.a(f'{Ld}:')
        if g.diag and cntreg is not None:
            g.a(f's_mov_b32 s{cntreg}, s{sCNT}')

    def common_consts(g, v):
        a = g.a
        a(f'v_and_b32 v{v["L"]}, 63, v0')
        a(f'v_lshrrev_b32 v{v["t0"]}, 6, v0')
        a(f'v_and_b32 v{v["J"]}, 15, v0')
        a(f'v_readfirstlane_b32 s{sWAVE}, v{v["t0"]}')
        a(f'v_bfe_u32 v{v["KB"]}, v0, 4, 2')
        for k in range(4):
            a(f's_mov_b32 s{sTS+k}, {hex(0x07060500 + k)}')
        a(f's_mov_b32 s{sCA}, 0x0c0c0400')
        a(f's_mov_b32 s{sCB}, 0x04000c0c')
        a(f's_mov_b32 s{sMSK}, 0xffffff00')
        a(f's_mov_b32 s{sL2E}, {hex(LOG2E)}')
        a(f's_mov_b32 s{sHIM}, 0xffff0000')
        if g.diag:
            for k in list(range(sST + 2, sST + 32)) + [100, 101, 40]:
                a(f's_mov_b32 s{k}, 0')

    def masks(g, v):
        a = g.a
        t0, t1 = v['t0'], v['t1']
        a(f'v_and_b32 v{t0}, 1, v0')
        a(f'v_lshlrev_b32 v{t0}, 4, v{t0}')
        a(f'v_mov_b32 v{t1}, 0xffff')
        a(f'v_lshlrev_b32 v{t0}, v{t0}, v{t1}')
        a(f'v_bfe_u32 v{t1}, v0, 1, 2')
        for d in range(4):
            a(f'v_cmp_eq_u32 vcc, {d}, v{t1}')
            a(f'v_cndmask_b32 v{v["M"]+d}, 0, v{t0}, vcc')

    def srd_words(g, r, nbytes):
        g.a(f's_mov_b32 s{r+2}, {hex(nbytes)}')
        g.a(f's_mov_b32 s{r+3}, 0x20000')

    def final_setup(g, v):
        a = g.a
        a(f's_lshr_b32 s4, s2, 3')
        a(f's_and_b32 s5, s2, 7')
        a(f's_lshl_b32 s6, s4, 2'); a(f's_add_u32 s6, s6, s{sWAVE}')
        a(f's_lshl_b32 s7, s5, 8')
        a(f's_lshl_b32 s{sOO}, s6, 16'); a(f's_add_u32 s{sOO}, s{sOO}, s7')
        a(f's_mul_i32 s{sOD}, s6, {28*2048}'); a(f's_add_u32 s{sOD}, s{sOD}, s7')
        a(f'v_lshlrev_b32 v{v["t0"]}, 4, v{v["J"]}')
        a(f'v_lshl_add_u32 v{v["oWO"]}, v{v["KB"]}, 14, v{v["t0"]}')
        a(f'v_lshl_add_u32 v{v["oWD"]}, v{v["KB"]}, 11, v{v["t0"]}')
        a(f's_lshl_b32 s{sGO}, s4, 13'); a(f's_lshl_b32 s7, s{sWAVE}, 7'); a(f's_add_u32 s{sGO}, s{sGO}, s7')
        a(f's_add_u32 s{sGO}, s{sGO}, {WS_OP}')
        a(f'v_lshlrev_b32 v{v["t1"]}, 5, v{v["KB"]}')
        a(f'v_lshl_add_u32 v{v["oGO"]}, v{v["J"]}, 9, v{v["t1"]}')
        a(f's_lshl_b32 s{sGM}, s4, 8'); a(f's_add_u32 s{sGM}, s{sGM}, {WS_ML}')
        a(f'v_mov_b32 v{v["oGM"]}, v{v["t0"]}')
        a(f's_mul_i32 s{sGH}, s6, 112'); a(f's_add_u32 s{sGH}, s{sGH}, {WS_GU}')
        a(f'v_lshrrev_b32 v{v["t0"]}, 5, v{v["L"]}')
        a(f'v_bfe_u32 v{v["t1"]}, v0, 3, 2')
        a(f'v_mad_u32_u24 v{v["t0"]}, v{v["t0"]}, 3, v{v["t1"]}')
        a(f'v_mul_u32_u24 v{v["t0"]}, 14336, v{v["t0"]}')
        a(f'v_and_b32 v{v["t1"]}, 7, v0')
        a(f'v_lshl_add_u32 v{v["t0"]}, v{v["t1"]}, 4, v{v["t0"]}')
        a(f's_mov_b32 s{sVAL}, 0x007f7f7f'); a(f's_mov_b32 s{sVAL+1}, 0x007f7f7f')
        a(f'v_mov_b32 v{v["t1"]}, 0x7ff00000')
        a(f'v_cndmask_b32 v{v["oGH"]}, v{v["t1"]}, v{v["t0"]}, s[{sVAL}:{sVAL+1}]')
        a(f's_lshl_b32 s{sFIN}, s5, 14'); a(f's_lshl_b32 s7, s4, 9'); a(f's_add_u32 s{sFIN}, s{sFIN}, s7')
        a(f's_add_u32 s{sFIN}, s{sFIN}, {WS_FIN}')

    def final_pending(g, v):
        nt = g.p['ntf']
        P = []
        for t in range(8):
            r = v['WO'] + 4 * t
            P.append((f'wo{t}', [f'buffer_load_dwordx4 v[{r}:{r+3}], v{v["oWO"]}, {srd(rWO)}, s{sOO} offen {nt}',
                                 f's_add_u32 s{sOO}, s{sOO}, 2048'], True))
        for t in range(7):
            r = v['WD'] + 4 * t
            P.append((f'wd{t}', [f'buffer_load_dwordx4 v[{r}:{r+3}], v{v["oWD"]}, {srd(rWD)}, s{sOD} offen {nt}',
                                 f's_add_u32 s{sOD}, s{sOD}, 8192'], True))
        GO, GM, GH = v['GO'], v['GM'], v['GH']
        g.lO = [f'buffer_load_dwordx4 v[{GO}:{GO+3}], v{v["oGO"]}, {srd(rWS)}, s{sGO} offen sc1',
                f'buffer_load_dwordx4 v[{GO+4}:{GO+7}], v{v["oGO"]}, {srd(rWS)}, s{sGO} offen offset:16 sc1',
                f'buffer_load_dwordx4 v[{GM}:{GM+3}], v{v["oGM"]}, {srd(rWS)}, s{sGM} offen sc1']
        g.lH = [f'buffer_load_dwordx4 v[{GH}:{GH+3}], v{v["oGH"]}, {srd(rWS)}, s{sGH} offen sc1']
        return P

    def insert_gathers(g, posO, posH):
        n = len(g.pending)
        i = max(0, n - posH)
        g.pending[i:i] = [('gH', g.lH, False)]
        i = max(0, n - posO)
        g.pending[i:i] = [(f'gO{k}', [l], False) for k, l in enumerate(g.lO)]

    def final_phase(g, v, depth):
        a = g.a
        GO, GM, GH, M = v['GO'], v['GM'], v['GH'], v['M']
        t0, t1, t2, t3 = v['t0'], v['t1'], v['t2'], v['t3']
        T = v['TMP']
        AF = v['AF']
        names = [e[0] for e in g.pending if e[2]]
        stop = f'wd{7-g.p["chkO"]}' if g.p['chkO'] > 0 else 'wd6'
        if stop not in g.ops:
            g.drain_to(stop, depth)
        if 'gO2' not in g.ops:
            g.drain_to('gO2', depth)
        g.wait('gO2')
        g.stamp(6)
        g.gather_check(g.lO, [GO, GO + 4, GM], (t0, t1, t2), v['T'], cntreg=100)
        g.stamp(7)
        g.top_up(depth)
        for k in range(8):
            a(f'v_and_b32 v{GO+k}, s{sMSK}, v{GO+k}')
        a(f'v_and_b32 v{GM}, s{sMSK}, v{GM}')
        a(f'v_and_b32 v{GM+1}, s{sMSK}, v{GM+1}')
        a(f'v_mov_b32 v{t0}, v{GM}')
        g.allreduce16('v_max_f32', [t0])
        a(f'v_sub_f32 v{t0}, v{GM}, v{t0}')
        a(f'v_mul_f32 v{t0}, s{sL2E}, v{t0}')
        a(f'v_exp_f32 v{t0}, v{t0}')
        a(f'v_mul_f32 v{t1}, v{t0}, v{GM+1}')
        for k in range(8):
            a(f'v_mul_f32 v{GO+k}, v{t0}, v{GO+k}')
        g.allreduce16('v_add_f32', [t1] + [GO + k for k in range(8)])
        a(f'v_rcp_f32 v{t0}, v{t1}')
        a(f'v_fma_f32 v{t2}, -v{t0}, v{t1}, 1.0')
        a(f'v_fma_f32 v{t0}, v{t2}, v{t0}, v{t0}')
        for k in range(8):
            a(f'v_mul_f32 v{GO+k}, v{t0}, v{GO+k}')
        for k in range(8):
            a(f'v_cvt_pk_bf16_f32 v{GO+k}, v{GO+k}, v{GO+k}')
        for t in range(8):
            for d in range(4):
                a(f'v_and_b32 v{AF+4*t+d}, v{GO+t}, v{M+d}')
        DO, DD = v['DO'], v['DD']
        for t in range(8):
            if f'wo{t}' not in g.ops:
                g.drain_to(f'wo{t}', depth)
            g.wait(f'wo{t}')
            r = v['WO'] + 4 * t
            a(f'v_mfma_f32_16x16x32_bf16 v[{DO}:{DO+3}], v[{AF+4*t}:{AF+4*t+3}], v[{r}:{r+3}], {"0" if t == 0 else f"v[{DO}:{DO+3}]"}')
        a(f'v_and_b32 v{t0}, 1, v{v["KB"]}')
        a(f'v_lshlrev_b32 v{t0}, 4, v{t0}')
        a(f'v_lshl_add_u32 v{t0}, v{v["J"]}, 5, v{t0}')
        a(f's_lshl_b32 s4, s{sWAVE}, 9'); a(f's_add_u32 s4, s4, {L_RED}')
        a(f'v_add_u32 v{v["aRED"]}, s4, v{t0}')
        last = [e[0] for e in g.pending]
        if last:
            g.drain_to(last[-1], depth)
        a(f'ds_write_b128 v{v["aRED"]}, v[{DO}:{DO+3}]')
        g.wait('gH')
        g.stamp(8)
        g.gather_check(g.lH, [GH], (t0, t1, t2), v['T'], valid=sVAL, cntreg=101)
        g.stamp(9)
        G = [GH + k for k in range(4)]
        U = [T + k for k in range(4)]
        for r in G:
            a(f'v_and_b32 v{r}, s{sMSK}, v{r}')
        for r in G:
            a(f'v_add_f32_dpp v{r}, v{r}, v{r} row_ror:8 {DPP}')
        g.swapred('v_add_f32', G, U, 16)
        for r, u in zip(G, U):
            a(f'v_mov_b32 v{u}, v{r}')
        for r, u in zip(G, U):
            a(f'v_permlane32_swap_b32 v{r}, v{u}')
        a(f'v_cvt_pk_bf16_f32 v{t0}, v{G[0]}, v{G[1]}'); a(f'v_cvt_pk_bf16_f32 v{t1}, v{G[2]}, v{G[3]}')
        a(f'v_cvt_pk_bf16_f32 v{t2}, v{U[0]}, v{U[1]}'); a(f'v_cvt_pk_bf16_f32 v{t3}, v{U[2]}, v{U[3]}')
        for (lo, hi, s) in ((G[0], G[1], t0), (G[2], G[3], t1), (U[0], U[1], t2), (U[2], U[3], t3)):
            a(f'v_lshlrev_b32 v{lo}, 16, v{s}')
            a(f'v_and_b32 v{hi}, s{sHIM}, v{s}')
        Y = [T + 4 + k for k in range(4)]
        import struct
        f2u = lambda x: struct.unpack('<I', struct.pack('<f', x))[0]
        c1 = -2.0 * 1.4426950408889634 * 0.7978845608028654
        a(f's_mov_b32 s4, {hex(f2u(c1 * 0.044715))}')
        a(f'v_mov_b32 v{t0}, {hex(f2u(c1))}')
        for r, y in zip(G, Y):
            a(f'v_mul_f32 v{y}, v{r}, v{r}')
        for r, y in zip(G, Y):
            a(f'v_fma_f32 v{y}, v{y}, s4, v{t0}')
        for r, y in zip(G, Y):
            a(f'v_mul_f32 v{y}, v{y}, v{r}')
        for y in Y:
            a(f'v_exp_f32 v{y}, v{y}')
        for y in Y:
            a(f'v_add_f32 v{y}, 1.0, v{y}')
        for y in Y:
            a(f'v_rcp_f32 v{y}, v{y}')
        for r, y in zip(G, Y):
            a(f'v_mul_f32 v{y}, v{y}, v{r}')
        a(f'v_cvt_pk_bf16_f32 v{t0}, v{Y[0]}, v{Y[1]}'); a(f'v_cvt_pk_bf16_f32 v{t1}, v{Y[2]}, v{Y[3]}')
        for (lo, hi, s) in ((Y[0], Y[1], t0), (Y[2], Y[3], t1)):
            a(f'v_lshlrev_b32 v{lo}, 16, v{s}')
            a(f'v_and_b32 v{hi}, s{sHIM}, v{s}')
        for u, y in zip(U, Y):
            a(f'v_mul_f32 v{y}, v{y}, v{u}')
        for y in Y:
            a(f'v_cvt_pk_bf16_f32 v{y}, v{y}, v{y}')
        a(f's_lshl_b32 s4, s{sWAVE}, 7'); a(f's_add_u32 s4, s4, {L_HS}')
        a(f'v_and_b32 v{t0}, 7, v0')
        a(f'v_lshl_add_u32 v{t0}, v{t0}, 4, s4')
        a(f'v_lshl_add_u32 v{t1}, v{v["KB"]}, 2, s4')
        a('s_mov_b64 exec, 0xff')
        a(f'ds_write_b128 v{t0}, v[{Y[0]}:{Y[3]}]')
        a('s_mov_b64 exec, -1')
        H = [T + 8 + k for k in range(8)]
        for k in range(0, 6, 2):
            a(f'ds_read2_b32 v[{H[k]}:{H[k+1]}], v{t1} offset0:{4*k} offset1:{4*k+4}')
        a(f'ds_read_b32 v{H[6]}, v{t1} offset:96')
        a('s_waitcnt lgkmcnt(0)')
        for t in range(7):
            for d in range(4):
                a(f'v_and_b32 v{AF+4*t+d}, v{H[t]}, v{M+d}')
        g.stamp(10)
        for t in range(7):
            g.wait(f'wd{t}')
            r = v['WD'] + 4 * t
            a(f'v_mfma_f32_16x16x32_bf16 v[{DD}:{DD+3}], v[{AF+4*t}:{AF+4*t+3}], v[{r}:{r+3}], {"0" if t == 0 else f"v[{DD}:{DD+3}]"}')
        g.stamp(11)
        a(f'v_lshrrev_b32 v{t0}, 5, v{v["L"]}')
        a(f'v_and_b32 v{t1}, 31, v0')
        a(f'v_lshlrev_b32 v{t1}, 4, v{t1}')
        a(f'v_lshl_add_u32 v{t3}, v{t0}, 17, v{t1}')
        a(f'ds_write_b128 v{v["aRED"]}, v[{DD}:{DD+3}] offset:2048')
        a('s_waitcnt lgkmcnt(0)')
        a('s_barrier')
        Ls = g.lab('nopub')
        a(f's_cmp_lg_u32 s{sWAVE}, 0'); a(f's_cbranch_scc1 {Ls}')
        for w in range(4):
            a(f'ds_read_b128 v[{T+4*w}:{T+4*w+3}], v{v["aRD"]} offset:{512*w}')
        a('s_waitcnt lgkmcnt(2)')
        for k in range(4):
            a(f'v_add_f32 v{T+k}, v{T+k}, v{T+4+k}')
        a('s_waitcnt lgkmcnt(0)')
        for k in range(4):
            a(f'v_add_f32 v{T+8+k}, v{T+8+k}, v{T+12+k}')
        for k in range(4):
            a(f'v_add_f32 v{T+k}, v{T+k}, v{T+8+k}')
        g.tag4(T, v['T'])
        a(f'buffer_store_dwordx4 v[{T}:{T+3}], v{t3}, {srd(rWS)}, s{sFIN} offen sc1')
        a(f'{Ls}:')
        g.stamp(12)

    def path_P(g):
        a = g.a
        p = g.p
        v = dict(L=1, J=2, KB=3, t0=4, t1=5, t2=6, t3=7, M=8, T=12, oQ=13, oG=14, oWO=15, oWD=16, oGO=17, oGM=18, oGH=19,
                 aRED=20, aRD=21, E=22, aRQ=23, DQ=24, DG=28, DU=32, DO=36, DD=40, GO=44, GM=52, GH=56, TMP=60,
                 AX=76, WQ=120, WG=164, WU=208, WO=120, WD=164, AF=76, X=60)
        g.reset_stream()
        a('L_P:')
        for r, off in ((rX, 0), (rWS, 88), (rM1, 24), (rM2, 48), (rM3, 56), (rWO, 32), (rWD, 64), (rOUT, 72)):
            a(f's_load_dwordx2 s[{r}:{r+1}], s[0:1], {off}')
        g.srd_words(rX, 2048); g.srd_words(rWS, 0x10000000 if g.diag else 0x200000); g.srd_words(rM1, 1024 * 8192)
        g.common_consts(v)
        a('s_sub_u32 s4, s2, 64')
        a(f's_lshr_b32 s{sRG}, s4, 6'); a(f's_and_b32 s{sC64}, s4, 63')
        a(f's_mul_i32 s5, s{sRG}, 352'); a(f's_mul_i32 s6, s{sWAVE}, 88'); a('s_add_u32 s59, s5, s6')
        a(f's_lshl_b32 s7, s{sC64}, 7')
        a(f's_lshl_b32 s{sO1}, s59, 13'); a(f's_add_u32 s{sO1}, s{sO1}, s7')
        a(f's_mul_i32 s{sO2}, s59, 7168'); a(f's_add_u32 s{sO2}, s{sO2}, s7'); a(f's_mov_b32 s{sO3}, s{sO2}')
        a(f'v_bfe_u32 v{v["t2"]}, v0, 3, 3')
        a(f'v_and_b32 v{v["t1"]}, 7, v0'); a(f'v_lshlrev_b32 v{v["t1"]}, 4, v{v["t1"]}')
        a(f'v_lshl_add_u32 v{v["oQ"]}, v{v["t2"]}, 13, v{v["t1"]}')
        a(f'v_mul_u32_u24 v{v["t3"]}, 7168, v{v["t2"]}'); a(f'v_add_u32 v{v["oG"]}, v{v["t3"]}, v{v["t1"]}')
        a(f'v_lshlrev_b32 v{v["t0"]}, 5, v{v["L"]}')
        a(f'v_mov_b32 v{v["t3"]}, 0')
        nt = p['ntf']
        for nm, R, rs, so, vo, step in (('wq', v['WQ'], rM1, sO1, v['oQ'], 65536), ('wg', v['WG'], rM2, sO2, v['oG'], 57344),
                                        ('wu', v['WU'], rM3, sO3, v['oG'], 57344)):
            for t in range(11):
                r = R + 4 * t
                g.pending.append((f'{nm}{t}', [f'buffer_load_dwordx4 v[{r}:{r+3}], v{vo}, {srd(rs)}, s{so} offen {nt}',
                                               f's_add_u32 s{so}, s{so}, {step}'], True))
        fin = g.final_pending(v)
        a('s_waitcnt lgkmcnt(0)')
        g.stamp(1)
        X = v['X']
        g.issue('x0', [f'buffer_load_dwordx4 v[{X}:{X+3}], v{v["t0"]}, {srd(rX)}, 0 offen'])
        g.issue('x1', [f'buffer_load_dwordx4 v[{X+4}:{X+7}], v{v["t0"]}, {srd(rX)}, 0 offen offset:16'])
        g.issue('E', [f'buffer_load_dword v{v["E"]}, v{v["t3"]}, {srd(rWS)}, 0 offen sc1'])
        g.pump(p['burstP'])
        a(f's_cmp_lt_u32 s{sC64}, 56')
        a(f's_cselect_b32 s{rM2+2}, {hex(1024*7168)}, 0'); a(f's_mov_b32 s{rM2+3}, 0x20000')
        a(f's_mov_b32 s{rM3+2}, s{rM2+2}'); a(f's_mov_b32 s{rM3+3}, 0x20000')
        g.srd_words(rWO, 4096 * 2048); g.srd_words(rWD, 3584 * 2048); g.srd_words(rOUT, 2048)
        aXR = v['aRQ']
        a(f's_lshl_b32 s4, s59, 1')
        a(f'v_lshl_add_u32 v{aXR}, v{v["t2"]}, 1, s4')
        a(f'v_lshlrev_b32 v{v["t1"]}, 2, v{v["J"]}')
        a(f'ds_write_b32 v{v["t1"]}, v{v["t3"]} offset:{L_XN+2048}')
        g.masks(v)
        g.final_setup(v)
        a(f'v_lshlrev_b32 v{v["t0"]}, 5, v{v["L"]}')
        g.wait('x1')
        g.stamp(2)
        a(f'ds_write_b128 v{v["t0"]}, v[{X}:{X+3}] offset:{L_XN}')
        a(f'ds_write_b128 v{v["t0"]}, v[{X+4}:{X+7}] offset:{L_XN+16}')
        F = v['WU']
        XV = F + 16
        for t in range(11):
            a(f'ds_read_u16 v{XV+t}, v{aXR} offset:{L_XN+16*t}')
        for k in range(8):
            a(f'v_lshlrev_b32 v{F+2*k}, 16, v{X+k}')
            a(f'v_and_b32 v{F+2*k+1}, s{sHIM}, v{X+k}')
        t0, t1, t2, t3 = v['t0'], v['t1'], v['t2'], v['t3']
        for k in range(4):
            a(f'v_add_f32 v{X+k}, v{F+k}, v{F+4+k}')
        for k in range(4):
            a(f'v_add_f32 v{X+4+k}, v{F+8+k}, v{F+12+k}')
        for k in range(4):
            a(f'v_add_f32 v{X+k}, v{X+k}, v{X+4+k}')
        a(f'v_add_f32 v{X}, v{X}, v{X+1}'); a(f'v_add_f32 v{X+2}, v{X+2}, v{X+3}'); a(f'v_add_f32 v{t0}, v{X}, v{X+2}')
        g.allreduce16('v_add_f32', [t0])
        g.swapred('v_add_f32', [t0], [t1], 16)
        g.swapred('v_add_f32', [t0], [t1], 32)
        a(f'v_mul_f32 v{t0}, 0x3a800000, v{t0}')
        for k in range(16):
            a(f'v_sub_f32 v{F+k}, v{F+k}, v{t0}')
        for k in range(4):
            a(f'v_mul_f32 v{X+k}, v{F+k}, v{F+k}')
        for k in range(4, 16):
            a(f'v_fmac_f32 v{X+(k&3)}, v{F+k}, v{F+k}')
        a(f'v_add_f32 v{X}, v{X}, v{X+1}'); a(f'v_add_f32 v{X+2}, v{X+2}, v{X+3}'); a(f'v_add_f32 v{t2}, v{X}, v{X+2}')
        a(f'v_cvt_pk_bf16_f32 v{t0}, v{t0}, v{t0}')
        a(f'v_lshlrev_b32 v{t0}, 16, v{t0}')
        g.allreduce16('v_add_f32', [t2])
        g.swapred('v_add_f32', [t2], [t1], 16)
        g.swapred('v_add_f32', [t2], [t1], 32)
        g.pump(p['lnpump'])
        a(f'v_mul_f32 v{t2}, 0x3a800000, v{t2}')
        a(f'v_cvt_pk_bf16_f32 v{t2}, v{t2}, v{t2}'); a(f'v_lshlrev_b32 v{t2}, 16, v{t2}')
        a(f'v_add_f32 v{t2}, 0x3727c5ac, v{t2}')
        a(f'v_cvt_pk_bf16_f32 v{t2}, v{t2}, v{t2}'); a(f'v_lshlrev_b32 v{t2}, 16, v{t2}')
        a(f'v_sqrt_f32 v{t2}, v{t2}')
        a(f'v_cvt_pk_bf16_f32 v{t2}, v{t2}, v{t2}'); a(f'v_lshlrev_b32 v{t2}, 16, v{t2}')
        a(f'v_rcp_f32 v{t3}, v{t2}')
        a('s_waitcnt lgkmcnt(0)')
        for t in range(11):
            a(f'v_lshlrev_b32 v{XV+t}, 16, v{XV+t}')
        for t in range(11):
            a(f'v_sub_f32 v{XV+t}, v{XV+t}, v{t0}')
        for t in range(11):
            a(f'v_cvt_pk_bf16_f32 v{XV+t}, v{XV+t}, v{XV+t}')
        for t in range(11):
            a(f'v_and_b32 v{XV+t}, s{sHIM}, v{XV+t}')
        for t in range(11):
            a(f'v_mul_f32 v{F+t}, v{XV+t}, v{t3}')
        for t in range(11):
            a(f'v_fma_f32 v{XV+t}, -v{F+t}, v{t2}, v{XV+t}')
        for t in range(11):
            a(f'v_fmac_f32 v{F+t}, v{XV+t}, v{t3}')
        for t in range(11):
            a(f'v_cvt_pk_bf16_f32 v{F+t}, v{F+t}, v{F+t}')
        AX, M = v['AX'], v['M']
        for t in range(11):
            for d in range(4):
                a(f'v_and_b32 v{AX+4*t+d}, v{F+t}, v{M+d}')
        g.wait('E')
        a(f'v_add_u32 v{v["T"]}, 0x01010101, v{v["E"]}')
        g.stamp(3)
        g.pending += fin
        g.insert_gathers(p['posO'], p['posH'])
        aRQ = v['aRQ']
        a(f'v_lshrrev_b32 v{t0}, 1, v{v["KB"]}'); a(f'v_lshlrev_b32 v{t0}, 8, v{t0}')
        a(f'v_and_b32 v{t1}, 1, v{v["KB"]}'); a(f'v_lshl_add_u32 v{t0}, v{t1}, 4, v{t0}')
        a(f'v_and_b32 v{t1}, 7, v0'); a(f'v_lshl_add_u32 v{t0}, v{t1}, 5, v{t0}')
        a(f's_lshl_b32 s4, s{sWAVE}, 9'); a(f's_add_u32 s4, s4, {L_RQ}')
        a(f'v_add_u32 v{aRQ}, s4, v{t0}')
        a(f'v_lshrrev_b32 v{t0}, 5, v{v["L"]}'); a(f'v_and_b32 v{t1}, 31, v0'); a(f'v_lshlrev_b32 v{t1}, 4, v{t1}')
        a(f'v_lshl_add_u32 v{t0}, v{t0}, 11, v{t1}'); a(f'v_add_u32 v{v["aRD"]}, {L_RED}, v{t0}')
        a(f's_mov_b32 s{sHI8}, 0x00ff00ff'); a(f's_mov_b32 s{sHI8+1}, 0xff00ff00')

        def gemv(nm, R, D):
            for t in range(11):
                if f'{nm}{t}' not in g.ops:
                    g.drain_to(f'{nm}{t}', p['dP'])
                g.wait(f'{nm}{t}')
                r = R + 4 * t
                a(f'v_mfma_f32_16x16x32_bf16 v[{D}:{D+3}], v[{AX+4*t}:{AX+4*t+3}], v[{r}:{r+3}], {"0" if t == 0 else f"v[{D}:{D+3}]"}')
                g.top_up(p['dP'])

        def red_write(D, m):
            a(f's_mov_b64 exec, s[{sHI8}:{sHI8+1}]')
            a(f'ds_write_b128 v{aRQ}, v[{D}:{D+3}] offset:{2048*m}')
            a('s_mov_b64 exec, -1')

        T = v['TMP']

        def red_publish(wave, nl, lds_base, so_lines, cond=None):
            Ls = g.lab('np')
            a(f's_cmp_lg_u32 s{sWAVE}, {wave}'); a(f's_cbranch_scc1 {Ls}')
            if cond:
                for l in cond: a(l)
                a(f's_cbranch_scc1 {Ls}')
            a(f'v_lshlrev_b32 v{t0}, 4, v{v["J"]}')
            a(f'v_and_b32 v{t1}, 1, v{v["KB"]}')
            a(f'v_lshl_add_u32 v{t2}, v{t1}, 11, v{t0}')
            a(f'v_mul_u32_u24 v{t1}, {3*14336}, v{t1}'); a(f'v_add_u32 v{t3}, v{t1}, v{t0}')
            for l in so_lines: a(l)
            a(f's_bfm_b64 exec, {nl}, 0')
            for k in range(4):
                a(f'ds_read_b128 v[{T+4*k}:{T+4*k+3}], v{t2} offset:{lds_base+256*k}')
            a('s_waitcnt lgkmcnt(0)')
            for k in range(4):
                a(f'v_add_f32 v{T+k}, v{T+k}, v{T+4+k}')
            for k in range(4):
                a(f'v_add_f32 v{T+8+k}, v{T+8+k}, v{T+12+k}')
            for k in range(4):
                a(f'v_add_f32 v{GH_+k}, v{T+k}, v{T+8+k}')
            for k in range(4):
                a(f'ds_read_b128 v[{T+4*k}:{T+4*k+3}], v{t2} offset:{lds_base+1024+256*k}')
            a('s_waitcnt lgkmcnt(0)')
            for k in range(4):
                a(f'v_add_f32 v{T+k}, v{T+k}, v{T+4+k}')
            for k in range(4):
                a(f'v_add_f32 v{T+8+k}, v{T+8+k}, v{T+12+k}')
            for k in range(4):
                a(f'v_add_f32 v{T+k}, v{T+k}, v{T+8+k}')
            for k in range(4):
                a(f'v_add_f32 v{T+k}, v{T+k}, v{GH_+k}')
            g.tag4(T, v['T'])
            a(f'buffer_store_dwordx4 v[{T}:{T+3}], v{t3}, {srd(rWS)}, s{sPUB} offen sc1')
            a('s_mov_b64 exec, -1')
            a(f'{Ls}:')
        GH_ = v['DD']

        gemv('wq', v['WQ'], v['DQ'])
        red_write(v['DQ'], 0)
        a('s_waitcnt lgkmcnt(0)'); a('s_barrier')
        red_publish(0, 16, L_RQ, [f's_lshl_b32 s{sPUB}, s{sRG}, 14', f's_lshl_b32 s4, s{sC64}, 8', f's_add_u32 s{sPUB}, s{sPUB}, s4',
                                  f's_add_u32 s{sPUB}, s{sPUB}, {WS_QP}'])
        g.stamp(4)
        gemv('wg', v['WG'], v['DG'])
        red_write(v['DG'], 1)
        gemv('wu', v['WU'], v['DU'])
        red_write(v['DU'], 2)
        a('s_waitcnt lgkmcnt(0)'); a('s_barrier')
        red_publish(1, 32, L_RQ + 2048, [f's_mul_i32 s{sPUB}, s{sRG}, 14336', f's_lshl_b32 s4, s{sC64}, 8', f's_add_u32 s{sPUB}, s{sPUB}, s4',
                                         f's_add_u32 s{sPUB}, s{sPUB}, {WS_GU}'], cond=[f's_cmp_ge_u32 s{sC64}, 56'])
        g.stamp(5)
        g.final_phase(v, p['dP'])
        a(f's_cmp_lt_u32 s{sC64}, 56'); a('s_cbranch_scc1 L_fin')
        a(f's_cmp_gt_u32 s{sRG}, 1'); a('s_cbranch_scc1 L_fin')
        a(f's_and_b32 s4, s{sC64}, 7'); a(f's_lshl_b32 s5, s{sRG}, 3'); a('s_add_u32 s4, s4, s5')
        a(f's_lshl_b32 s4, s4, 2'); a(f's_add_u32 s4, s4, s{sWAVE}')
        a('s_lshr_b32 s5, s4, 3'); a('s_and_b32 s6, s4, 7')
        a('s_lshl_b32 s5, s5, 14'); a('s_lshl_b32 s6, s6, 6'); a('s_add_u32 s5, s5, s6')
        a(f's_add_u32 s{sO1}, s5, {WS_FIN}'); a(f's_add_u32 s{sO2}, s{sO1}, 8192')
        a(f's_add_u32 s{sO3}, s{sO1}, 131072'); a(f's_add_u32 s{sOO}, s{sO3}, 8192')
        a(f's_lshl_b32 s{sOD}, s4, 5')
        a(f'v_lshrrev_b32 v{t0}, 2, v{v["L"]}'); a(f'v_and_b32 v{t1}, 3, v0')
        a(f'v_lshlrev_b32 v{t3}, 3, v{t1}')
        a(f'v_lshlrev_b32 v{t1}, 4, v{t1}'); a(f'v_lshl_add_u32 v{v["oQ"]}, v{t0}, 9, v{t1}')
        a(f'v_mov_b32 v{v["oG"]}, v{t3}')
        XO = v['DQ']
        R = v['WU']
        a(f'buffer_load_dwordx2 v[{XO}:{XO+1}], v{v["oG"]}, {srd(rX)}, s{sOD} offen')
        lines = [f'buffer_load_dwordx4 v[{R+4*k}:{R+4*k+3}], v{v["oQ"]}, {srd(rWS)}, s{so} offen sc1' for k, so in enumerate((sO1, sO2, sO3, sOO))]
        for l in lines: a(l)
        a('s_waitcnt vmcnt(0)')
        g.gather_check(lines, [R, R + 4, R + 8, R + 12], (t0, t1, t2), v['T'], cntreg=40)
        g.stamp(13)
        for k in range(16):
            a(f'v_and_b32 v{R+k}, s{sMSK}, v{R+k}')
        for k in range(4):
            a(f'v_add_f32 v{R+k}, v{R+k}, v{R+4+k}')
        for k in range(4):
            a(f'v_add_f32 v{R+8+k}, v{R+8+k}, v{R+12+k}')
        for k in range(4):
            a(f'v_permlane32_swap_b32 v{R+k}, v{R+8+k}')
        for k in range(4):
            a(f'v_add_f32 v{R+k}, v{R+k}, v{R+8+k}')
        A_ = [R + k for k in range(4)]
        B_ = [R + 4 + k for k in range(4)]
        g.swapred('v_add_f32', A_, B_, 16)
        for rot in (8, 4):
            for r in A_:
                a(f'v_add_f32_dpp v{r}, v{r}, v{r} row_ror:{rot} {DPP}')
        a(f'v_cvt_pk_bf16_f32 v{R+8}, v{R}, v{R+1}'); a(f'v_cvt_pk_bf16_f32 v{R+9}, v{R+2}, v{R+3}')
        a(f'v_mov_b32 v{R+10}, v{R+8}'); a(f'v_mov_b32 v{R+11}, v{R+9}')
        a(f'v_permlane32_swap_b32 v{R+8}, v{R+10}'); a(f'v_permlane32_swap_b32 v{R+9}, v{R+11}')
        for (src, dst) in ((XO, R), (R + 8, R + 4), (R + 10, R + 12)):
            for k in range(2):
                a(f'v_lshlrev_b32 v{dst+2*k}, 16, v{src+k}')
                a(f'v_and_b32 v{dst+2*k+1}, s{sHIM}, v{src+k}')
        for k in range(4):
            a(f'v_add_f32 v{R+k}, v{R+k}, v{R+4+k}')
        a(f'v_cvt_pk_bf16_f32 v{R+4}, v{R}, v{R+1}'); a(f'v_cvt_pk_bf16_f32 v{R+5}, v{R+2}, v{R+3}')
        for k in range(2):
            a(f'v_lshlrev_b32 v{R+2*k}, 16, v{R+4+k}')
            a(f'v_and_b32 v{R+2*k+1}, s{sHIM}, v{R+4+k}')
        for k in range(4):
            a(f'v_add_f32 v{R+k}, v{R+k}, v{R+12+k}')
        a(f'v_cvt_pk_bf16_f32 v{R+4}, v{R}, v{R+1}'); a(f'v_cvt_pk_bf16_f32 v{R+5}, v{R+2}, v{R+3}')
        a('s_mov_b64 exec, 0xf')
        a(f'buffer_store_dwordx2 v[{R+4}:{R+5}], v{v["oG"]}, {srd(rOUT)}, s{sOD} offen')
        a(f's_cmp_lg_u32 s{sOD}, 0'); a('s_cbranch_scc1 L_nobump')
        a('s_mov_b64 exec, 1')
        a(f'buffer_store_dword v{v["T"]}, v{v["oG"]}, {srd(rWS)}, 0 offen sc1')
        a('L_nobump:')
        a('s_mov_b64 exec, -1')
        g.stamp(14)
        a('s_branch L_fin')

    def path_A(g):
        a = g.a
        p = g.p
        v = dict(L=1, J=2, KB=3, t0=4, t1=5, t2=6, t3=7, M=8, T=12, oQ=13, aQW=14, oWO=15, oWD=16, oGO=17, oGM=18, oGH=19,
                 aRED=20, aRD=21, E=22, aQR=23, oK=24, oV=28, aV=30, aK=32, DO=36, DD=40, GO=44, GM=52, GH=56, TMP=60,
                 AF=76, S=108, WO=124, WD=156, KF=184, QG=76, QF=88, PF=76, OA=248)
        g.reset_stream()
        a('L_A:')
        for r, off in ((rWS, 88), (rM1, 8), (rM2, 16), (rWO, 32), (rWD, 64)):
            a(f's_load_dwordx2 s[{r}:{r+1}], s[0:1], {off}')
        g.srd_words(rWS, 0x10000000 if g.diag else 0x200000); g.srd_words(rM1, 0x4000000); g.srd_words(rM2, 0x4000000)
        g.srd_words(rWO, 4096 * 2048); g.srd_words(rWD, 3584 * 2048)
        g.common_consts(v)
        t0, t1, t2, t3 = v['t0'], v['t1'], v['t2'], v['t3']
        J, KB, L = v['J'], v['KB'], v['L']
        a(f's_and_b32 s{sRG}, s2, 3'); a(f's_lshr_b32 s{sC64}, s2, 2')
        a(f's_lshl_b32 s4, s{sRG}, 24'); a(f's_lshl_b32 s5, s{sC64}, 16'); a('s_add_u32 s4, s4, s5')
        a(f's_lshl_b32 s5, s{sWAVE}, 14'); a('s_add_u32 s4, s4, s5')
        a(f's_add_u32 s{sO1}, s4, {61440*256}'); a(f's_mov_b32 s{sO2}, s{sO1}')
        a(f's_mov_b32 s{sO3}, s5')
        a(f'v_lshlrev_b32 v{t0}, 8, v{KB}')
        for jj in range(4):
            a(f'v_add_u32 v{t1}, {4*jj}, v{KB}')
            a(f'v_xor_b32 v{t1}, v{t1}, v{J}')
            a(f'v_lshl_add_u32 v{v["oK"]+jj}, v{t1}, 4, v{t0}')
        a(f'v_lshrrev_b32 v{t2}, 1, v{J}'); a(f'v_and_b32 v{t3}, 1, v0'); a(f'v_lshl_add_u32 v{t3}, v{t3}, 4, v{t0}')
        for jj in range(2):
            a(f'v_add_u32 v{t1}, {4*jj}, v{KB}')
            a(f'v_xor_b32 v{t1}, v{t1}, v{t2}')
            a(f'v_lshl_add_u32 v{v["oV"]+jj}, v{t1}, 5, v{t3}')
        a(f'v_mov_b32 v{t3}, 0')
        nt = p['ntf']
        for nm, rs, so, lb in (('k', rM1, sO1, L_K), ('v', rM2, sO2, L_V)):
            for i in range(16):
                jj = i & 3
                vo = v['oK'] + jj if nm == 'k' else v['oV'] + (jj & 1)
                lines = []
                if jj == 0:
                    lines.append(f's_add_u32 m0, s{sO3}, {lb + (i >> 2) * 4096}')
                lines.append(f'buffer_load_dwordx4 v{vo}, {srd(rs)}, s{so} offen offset:{jj*1024} {nt} lds')
                if jj == 3:
                    lines.append(f's_add_u32 s{so}, s{so}, 4096')
                g.pending.append((f'{nm}{i}', lines, True))
        QG = v['QG']
        lQ = [f'buffer_load_dwordx4 v[{QG+4*k}:{QG+4*k+3}], v{v["oQ"]}, {srd(rWS)}, s{so} offen sc1' for k, so in enumerate((sPUB, 59, sHI8))]
        pos = len(g.pending) - p['posQ']
        g.pending[pos:pos] = [(f'gQ{k}', [l], False) for k, l in enumerate(lQ)]
        a('s_waitcnt lgkmcnt(0)')
        g.stamp(1)
        g.issue('E', [f'buffer_load_dword v{v["E"]}, v{t3}, {srd(rWS)}, 0 offen sc1'])
        g.pump(p['dA'])
        g.masks(v)
        g.final_setup(v)
        a(f's_lshl_b32 s4, s{sRG}, 12'); a(f's_lshl_b32 s5, s{sWAVE}, 10'); a('s_add_u32 s4, s4, s5')
        a(f's_add_u32 s{sPUB}, s4, {WS_QP}'); a(f's_add_u32 s59, s{sPUB}, 16384'); a(f's_add_u32 s{sHI8}, s59, 16384')
        a(f'v_lshlrev_b32 v{v["oQ"]}, 4, v{L}')
        a(f'v_lshrrev_b32 v{t0}, 5, v{L}'); a(f'v_mul_u32_u24 v{t0}, 272, v{t0}')
        a(f'v_and_b32 v{t1}, 31, v0'); a(f'v_lshl_add_u32 v{t0}, v{t1}, 3, v{t0}')
        a(f's_mul_i32 s4, s{sWAVE}, 544'); a(f's_add_u32 s4, s4, {L_Q}'); a(f'v_add_u32 v{v["aQW"]}, s4, v{t0}')
        a(f'v_and_b32 v{t2}, 7, v0'); a(f'v_mul_u32_u24 v{t0}, 272, v{t2}')
        a(f'v_lshl_add_u32 v{t0}, v{KB}, 4, v{t0}'); a(f'v_add_u32 v{v["aQR"]}, {L_Q}, v{t0}')
        a(f'v_xor_b32 v{t0}, v{KB}, v{J}'); a(f'v_lshlrev_b32 v{t0}, 4, v{t0}'); a(f'v_lshl_add_u32 v{t0}, v{J}, 8, v{t0}')
        for s in range(4):
            a(f'v_xor_b32 v{t1}, {64*s}, v{t0}'); a(f'v_add_u32 v{v["aK"]+s}, s{sO3}, v{t1}')
        a(f'v_lshrrev_b32 v{t0}, 2, v{L}')
        a(f'v_and_b32 v{t1}, 7, v{t0}')
        a(f'v_and_b32 v{t2}, 3, v0'); a(f'v_lshlrev_b32 v{t2}, 3, v{t2}'); a(f'v_lshl_add_u32 v{t2}, v{t0}, 8, v{t2}')
        a(f'v_add_u32 v{t2}, {L_V}, v{t2}')
        a(f's_lshl_b32 s4, s{sWAVE}, 1')
        for dt in range(2):
            a(f'v_xor_b32 v{t3}, s4, v{t1}')
            a(f'v_lshl_add_u32 v{v["aV"]+dt}, v{t3}, 5, v{t2}')
            if dt == 0: a('s_add_u32 s4, s4, 1')
        a(f'v_lshrrev_b32 v{t0}, 5, v{L}'); a(f'v_and_b32 v{t1}, 31, v0'); a(f'v_lshlrev_b32 v{t1}, 4, v{t1}')
        a(f'v_lshl_add_u32 v{t0}, v{t0}, 11, v{t1}'); a(f'v_add_u32 v{v["aRD"]}, {L_RED}, v{t0}')
        g.wait('E')
        a(f'v_add_u32 v{v["T"]}, 0x01010101, v{v["E"]}')
        fin = g.final_pending(v)
        KF = v['KF']
        for T_ in range(4):
            g.drain_to(f'k{4*T_+3}', p['dA'])
            g.wait(f'k{4*T_+3}')
            g.top_up(p['dA'])
            for s in range(4):
                r = KF + 16 * T_ + 4 * s
                a(f'ds_read_b128 v[{r}:{r+3}], v{v["aK"]+s} offset:{4096*T_}')
        g.stamp(2)
        g.drain_to('v15', p['dA'])
        if 'gQ2' not in g.ops:
            g.drain_to('gQ2', p['dA'])
        g.wait('gQ2')
        g.stamp(3)
        g.gather_check(lQ, [QG, QG + 4, QG + 8], (t0, t1, t2), v['T'], cntreg=40)
        g.stamp(4)
        g.pending += fin
        g.pump(p['apump'])
        for k in range(12):
            a(f'v_and_b32 v{QG+k}, s{sMSK}, v{QG+k}')
        for k in range(4):
            a(f'v_add_f32 v{QG+k}, v{QG+k}, v{QG+4+k}')
        for k in range(4):
            a(f'v_add_f32 v{QG+k}, v{QG+k}, v{QG+8+k}')
        a(f'v_cvt_pk_bf16_f32 v{QG}, v{QG}, v{QG+1}'); a(f'v_cvt_pk_bf16_f32 v{QG+1}, v{QG+2}, v{QG+3}')
        a(f'ds_write_b64 v{v["aQW"]}, v[{QG}:{QG+1}]')
        a('s_waitcnt lgkmcnt(0)'); a('s_barrier')
        QF = v['QF']
        for s in range(4):
            a(f'ds_read_b128 v[{QF+4*s}:{QF+4*s+3}], v{v["aQR"]} offset:{64*s}')
        S = v['S']
        a(f's_mov_b32 s{sHI8}, 0xff00ff00'); a(f's_mov_b32 s{sHI8+1}, 0xff00ff00')
        for s in range(4):
            a(f's_waitcnt lgkmcnt({3-s})')
            for T_ in range(4):
                r = KF + 16 * T_ + 4 * s
                D = S + 4 * T_
                a(f'v_mfma_f32_16x16x32_bf16 v[{D}:{D+3}], v[{r}:{r+3}], v[{QF+4*s}:{QF+4*s+3}], {"0" if s == 0 else f"v[{D}:{D+3}]"}')
        T = v['TMP']
        aMW, aMR, aPW, aPR = T + 8, T + 9, T + 10, T + 11
        a(f'v_and_b32 v{t2}, 7, v0'); a(f'v_lshlrev_b32 v{t2}, 4, v{t2}')
        a(f'v_add_u32 v{aMR}, {L_MX}, v{t2}')
        a(f's_lshl_b32 s4, s{sWAVE}, 2'); a(f'v_add_u32 v{aMW}, s4, v{aMR}')
        a(f'v_lshl_add_u32 v{aPR}, v{KB}, 7, v{t2}'); a(f'v_add_u32 v{aPR}, {L_P}, v{aPR}')
        a(f'v_bfe_u32 v{t3}, v0, 3, 1'); a(f'v_lshl_add_u32 v{aPW}, v{t3}, 9, v{aPR}')
        a(f's_lshl_b32 s4, s{sWAVE}, 10'); a(f'v_add_u32 v{aPW}, s4, v{aPW}')
        Z = [T + k for k in range(8)]
        for k in range(4):
            a(f'v_cndmask_b32 v{Z[k]}, v{S+k}, v{S+4+k}, s[{sHI8}:{sHI8+1}]')
        for k in range(4):
            a(f'v_cndmask_b32 v{Z[4+k]}, v{S+8+k}, v{S+12+k}, s[{sHI8}:{sHI8+1}]')
        a(f's_mov_b32 s4, {hex(SCALE)}')
        for rep in range(2):
            for k in range(4):
                a(f'v_cvt_pk_bf16_f32 v{S+k}, v{Z[2*k]}, v{Z[2*k+1]}')
            for k in range(4):
                a(f'v_lshlrev_b32 v{Z[2*k]}, 16, v{S+k}')
                a(f'v_and_b32 v{Z[2*k+1]}, s{sHIM}, v{S+k}')
            if rep == 0:
                for k in range(8):
                    a(f'v_mul_f32 v{Z[k]}, s4, v{Z[k]}')
        a(f'v_max3_f32 v{t0}, v{Z[0]}, v{Z[1]}, v{Z[2]}'); a(f'v_max3_f32 v{t1}, v{Z[3]}, v{Z[4]}, v{Z[5]}')
        a(f'v_max3_f32 v{t0}, v{t0}, v{Z[6]}, v{Z[7]}'); a(f'v_max_f32 v{t0}, v{t0}, v{t1}')
        a(f'v_max_f32_dpp v{t0}, v{t0}, v{t0} row_ror:8 {DPP}')
        g.swapred('v_max_f32', [t0], [t1], 16)
        g.swapred('v_max_f32', [t0], [t1], 32)
        a('s_mov_b64 exec, 0xff')
        a(f'ds_write_b32 v{aMW}, v{t0}')
        a('s_mov_b64 exec, -1')
        a('s_waitcnt lgkmcnt(0)'); a('s_barrier')
        a(f'ds_read_b128 v[{S}:{S+3}], v{aMR}')
        a('s_waitcnt lgkmcnt(0)')
        MX = T + 12
        a(f'v_max3_f32 v{MX}, v{S}, v{S+1}, v{S+2}'); a(f'v_max_f32 v{MX}, v{MX}, v{S+3}')
        for k in range(8):
            a(f'v_sub_f32 v{Z[k]}, v{Z[k]}, v{MX}')
        for k in range(8):
            a(f'v_mul_f32 v{Z[k]}, s{sL2E}, v{Z[k]}')
        for k in range(8):
            a(f'v_exp_f32 v{Z[k]}, v{Z[k]}')
        for k in range(4):
            a(f'v_cvt_pk_bf16_f32 v{S+k}, v{Z[2*k]}, v{Z[2*k+1]}')
        a(f'ds_write_b128 v{aPW}, v[{S}:{S+3}]')
        for k in range(4):
            a(f'v_add_f32 v{Z[k]}, v{Z[k]}, v{Z[4+k]}')
        a(f'v_add_f32 v{Z[0]}, v{Z[0]}, v{Z[1]}'); a(f'v_add_f32 v{Z[2]}, v{Z[2]}, v{Z[3]}'); a(f'v_add_f32 v{t0}, v{Z[0]}, v{Z[2]}')
        a(f'v_add_f32_dpp v{t0}, v{t0}, v{t0} row_ror:8 {DPP}')
        g.swapred('v_add_f32', [t0], [t1], 16)
        g.swapred('v_add_f32', [t0], [t1], 32)
        a('s_mov_b64 exec, 0xff')
        a(f'ds_write_b32 v{aMW}, v{t0} offset:128')
        a('s_mov_b64 exec, -1')
        g.wait('v15')
        a('s_waitcnt lgkmcnt(0)'); a('s_barrier')
        g.top_up(p['dA'])
        PF = v['PF']
        VF = KF
        OA = v['OA']
        order = []
        for st in range(8):
            w_, u = st >> 1, st & 1
            a(f'ds_read_b128 v[{PF+4*st}:{PF+4*st+3}], v{aPR} offset:{512*st}')
            for dt in range(2):
                r = VF + 8 * st + 4 * dt
                off = w_ * 16384 + u * 4096
                a(f'ds_read_b64_tr_b16 v[{r}:{r+1}], v{v["aV"]+dt} offset:{off}')
                a(f'ds_read_b64_tr_b16 v[{r+2}:{r+3}], v{v["aV"]+dt} offset:{off+8192}')
            if st >= 2:
                order.append(st - 2)
                q = st - 2
                a('s_waitcnt lgkmcnt(10)')
                for dt in range(2):
                    r = VF + 8 * q + 4 * dt
                    D = OA + 4 * dt
                    a(f'v_mfma_f32_16x16x32_bf16 v[{D}:{D+3}], v[{r}:{r+3}], v[{PF+4*q}:{PF+4*q+3}], {"0" if q == 0 else f"v[{D}:{D+3}]"}')
        a(f'ds_read_b128 v[{S}:{S+3}], v{aMR} offset:128')
        for q in (6, 7):
            a(f's_waitcnt lgkmcnt({6 if q == 6 else 1})')
            for dt in range(2):
                r = VF + 8 * q + 4 * dt
                D = OA + 4 * dt
                a(f'v_mfma_f32_16x16x32_bf16 v[{D}:{D+3}], v[{r}:{r+3}], v[{PF+4*q}:{PF+4*q+3}], v[{D}:{D+3}]')
        a(f's_lshl_b32 s4, s{sRG}, 16'); a(f's_lshl_b32 s5, s{sC64}, 9'); a('s_add_u32 s4, s4, s5')
        a(f's_lshl_b32 s5, s{sWAVE}, 7'); a('s_add_u32 s4, s4, s5'); a(f's_add_u32 s4, s4, {WS_OP}')
        a(f'v_and_b32 v{t2}, 7, v0'); a(f'v_lshlrev_b32 v{t0}, 13, v{t2}')
        a(f'v_lshl_add_u32 v{t0}, v{t3}, 6, v{t0}'); a(f'v_lshl_add_u32 v{t0}, v{KB}, 4, v{t0}')
        a('s_waitcnt lgkmcnt(0)')
        a(f'v_add_f32 v{S}, v{S}, v{S+1}'); a(f'v_add_f32 v{S+2}, v{S+2}, v{S+3}')
        a(f'v_add_f32 v{S+5}, v{S}, v{S+2}'); a(f'v_mov_b32 v{S+4}, v{MX}')
        a(f'v_mov_b32 v{S+6}, v{MX}'); a(f'v_mov_b32 v{S+7}, v{MX}')
        g.tag4(S + 4, v['T'])
        a(f'v_lshlrev_b32 v{t1}, 8, v{t2}')
        a(f's_lshl_b32 s5, s{sRG}, 11'); a(f's_lshl_b32 s6, s{sC64}, 4'); a('s_add_u32 s5, s5, s6'); a(f's_add_u32 s5, s5, {WS_ML}')
        for k in range(4):
            a(f'v_cndmask_b32 v{S+k}, v{OA+k}, v{OA+4+k}, s[{sHI8}:{sHI8+1}]')
        g.tag4(S, v['T'])
        a(f'buffer_store_dwordx4 v[{S}:{S+3}], v{t0}, {srd(rWS)}, s4 offen sc1')
        Ls = g.lab('noml')
        a(f's_cmp_lg_u32 s{sWAVE}, 0'); a(f's_cbranch_scc1 {Ls}')
        a('s_mov_b64 exec, 0xff')
        a(f'buffer_store_dwordx4 v[{S+4}:{S+7}], v{t1}, {srd(rWS)}, s5 offen sc1')
        a('s_mov_b64 exec, -1')
        a(f'{Ls}:')
        g.stamp(5)
        g.insert_gathers(p['posOA'], p['posHA'])
        g.final_phase(v, p['dA'])

    def build(g):
        a = g.a
        a(f'{NAME}_kernel:')
        g.stamp(0)
        a('s_cmp_ge_u32 s2, 256'); a('s_cbranch_scc1 L_end')
        a('s_cmp_ge_u32 s2, 64'); a('s_cbranch_scc1 L_P')
        g.path_A()
        a('s_branch L_fin')
        g.path_P()
        a('L_fin:')
        if g.diag:
            a('s_waitcnt vmcnt(0)')
            g.stamp(15)
            a('s_waitcnt lgkmcnt(0)')
            a(f's_lshl_b32 s4, s2, 2'); a(f's_add_u32 s4, s4, s{sWAVE}'); a('s_lshl_b32 s4, s4, 7'); a(f's_add_u32 s4, s4, {WS_STAMP}')
            a('s_mov_b64 exec, 1')
            a('v_mov_b32 v1, 0')
            for k in range(16):
                a(f'v_mov_b32 v4, s{sST+2*k}')
                a(f'buffer_store_dword v4, v1, {srd(rWS)}, s4 offen offset:{4*k}')
            for k in range(3):
                a(f'v_mov_b32 v4, s{(100, 101, 40)[k]}')
                a(f'buffer_store_dword v4, v1, {srd(rWS)}, s4 offen offset:{64+4*k}')
        a('L_end:')
        a('s_endpgm')
        body = fix(g.o, verbose=True)
        head = open('cdna_kernels/' + NAME + '.s.ref').read().split('; Override launch')[0]
        txt = head + f'; @launch grid=(256,1,1) block=(256,1,1) lds={LDS_BYTES}\n'
        txt += f'.amdgcn_target "amdgcn-amd-amdhsa--gfx950"\n.text\n.globl {NAME}_kernel\n.p2align 8\n.type {NAME}_kernel,@function\n'
        txt += '\n'.join(l if l.endswith(':') else '    ' + l for l in body) + '\n'
        txt += f'''.section .rodata,"a"
.p2align 6
.amdhsa_kernel {NAME}_kernel
  .amdhsa_next_free_vgpr 256
  .amdhsa_next_free_sgpr 102
  .amdhsa_accum_offset 256
  .amdhsa_group_segment_fixed_size 0
  .amdhsa_kernarg_size 96
  .amdhsa_user_sgpr_count 2
  .amdhsa_user_sgpr_kernarg_segment_ptr 1
  .amdhsa_system_sgpr_workgroup_id_x 1
  .amdhsa_float_denorm_mode_32 3
.end_amdhsa_kernel
'''
        return txt


def gen(path, **kw):
    t = Gen(**kw).build()
    open(path, 'w').write(t)


if __name__ == '__main__':
    gen(sys.argv[1] if len(sys.argv) > 1 else 'k.s', diag=('diag' in sys.argv))
```
